```python
import torch

def _softmax(x, axis=-1):
    return torch.softmax(x, dim=axis)
def _gelu(x):
    return torch.nn.functional.gelu(x, approximate="tanh")
def _silu(x):
    return torch.nn.functional.silu(x)
def _sigmoid(x):
    return torch.sigmoid(x)
def _layernorm(x, axis=-1, eps=1e-5):
    m = x.mean(dim=axis, keepdim=True)
    v = x.var(dim=axis, keepdim=True, unbiased=False)
    return (x - m) / torch.sqrt(v + eps)
def _scatter_add(tgt, idx, src, axis=0):
    return tgt.clone().index_add_(axis, idx, src)
def _segment_sum(src, seg, n):
    out = torch.zeros((n,) + src.shape[1:], dtype=src.dtype)
    return out.index_add_(0, seg, src)
def _pad(x, pw):
    flat = tuple(v for pair in reversed(pw) for v in pair)
    return torch.nn.functional.pad(x, flat)

kernel_name = 'gated_mix__mha_block__swiglu_ffn__prompt'

def setup_inputs():

    _w = (lambda a: (lambda t: t.to(torch.bfloat16) if t.is_floating_point() else t)(torch.as_tensor(a)))
    def _A_setup():
        B, S, D, H = 1, 2048, 640, 32
        return {
            "x": _w((lambda *s: torch.randn(*s, dtype=torch.bfloat16) * 0.05)(B, S, D)),
            "wqkv": _w((lambda *s: torch.randn(*s, dtype=torch.bfloat16) * 0.8)(D, 3 * D)),
            "wo": _w((lambda *s: torch.randn(*s, dtype=torch.bfloat16) * 0.05)(D, D)),
        }
    _A_in = _A_setup()

    def _B_setup():
        B, S, D, F = 1, 2048, 640, 1728
        return {
            "x": _w((lambda *s: torch.randn(*s, dtype=torch.bfloat16) * 0.05)(B, S, D)),
            "w_gate": _w((lambda *s: torch.randn(*s, dtype=torch.bfloat16) * 0.1)(D, F)),
            "w_up": _w((lambda *s: torch.randn(*s, dtype=torch.bfloat16) * 0.1)(D, F)),
            "w_down": _w((lambda *s: torch.randn(*s, dtype=torch.bfloat16) * 0.1)(F, D)),
        }
    _B_in = _B_setup()

    return {
        "A_x": _A_in["x"],
        "A_wqkv": _A_in["wqkv"],
        "A_wo": _A_in["wo"],
        "B_x": _B_in["x"],
        "B_w_gate": _B_in["w_gate"],
        "B_w_up": _B_in["w_up"],
        "B_w_down": _B_in["w_down"],
        "gate_w": _w((lambda *s: torch.randn(*s, dtype=torch.bfloat16) * 0.05)(640) * 16.0),
    }

def reference(A_x, A_wqkv, A_wo, B_x, B_w_gate, B_w_up, B_w_down, gate_w):
    def _A_ref(x, wqkv, wo):
        B, S, D = x.shape
        H = 32
        Dh = D // H
        qkv = (lambda x, *d: x.permute(*d))((x @ wqkv).reshape(B, S, 3, H, Dh), 2, 0, 3, 1, 4)
        q, k, v = qkv[0], qkv[1], qkv[2]
        scores = torch.einsum("bhqd,bhkd->bhqk", q, k) * (Dh ** -0.5)
        p = _softmax(scores, axis=-1)
        o = torch.einsum("bhqk,bhkd->bhqd", p, v)
        return (lambda x, *d: x.permute(*d))(o, 0, 2, 1, 3).reshape(B, S, D) @ wo

    def _B_ref(x, w_gate, w_up, w_down):
        g = _silu(x @ w_gate)
        u = x @ w_up
        return (g * u) @ w_down

    x = A_x
    g = _sigmoid((x * gate_w).sum(-1, keepdims=True))
    a = _A_ref(x, A_wqkv, A_wo)
    b = _B_ref(x, B_w_gate, B_w_up, B_w_down)
    return g * a + (1 - g) * b
```

```python
import re

class Asm:
    def __init__(self):
        self.lines = []
        self._uid = 0
    def __call__(self, s):
        for l in s.split("\n"):
            l = l.strip()
            if l:
                self.lines.append(l)
    def label(self, name):
        self.lines.append(name + ":")
    def uid(self, p="L"):
        self._uid += 1
        return f"{p}_{self._uid}"
    def raw(self, s):
        self.lines.append(s)

def vr(b, n=1):
    return f"v{b}" if n == 1 else f"v[{b}:{b+n-1}]"
def sr(b, n=1):
    return f"s{b}" if n == 1 else f"s[{b}:{b+n-1}]"

_REG = re.compile(r"^(-|abs\()?\s*([vsa])(?:(\d+)|\[(\d+):(\d+)\])\)?$")
def parse_reg(tok):
    tok = tok.strip()
    if tok in ("vcc", "exec", "m0", "scc"):
        return [(tok, 0)]
    if tok in ("vcc_lo", "vcc_hi"):
        return [("vcc", 0)]
    if tok in ("exec_lo", "exec_hi"):
        return [("exec", 0)]
    m = _REG.match(tok)
    if not m:
        return []
    k = m.group(2)
    if m.group(3) is not None:
        return [(k, int(m.group(3)))]
    return [(k, i) for i in range(int(m.group(4)), int(m.group(5)) + 1)]

TRANS = ("v_exp_f32", "v_log_f32", "v_rcp_f32", "v_rsq_f32", "v_sqrt_f32", "v_sin_f32", "v_cos_f32")

class Ins:
    __slots__ = ("text", "op", "ops", "kind", "dst", "src", "passes", "srcC", "srcAB", "states", "store_data", "lds_dma")
    def __init__(self, text):
        self.text = text
        t = text.split(";")[0].strip()
        sp = t.split(None, 1)
        self.op = sp[0]
        rest = sp[1] if len(sp) > 1 else ""
        ops = []; depth = 0; cur = ""
        for ch in rest:
            if ch == "[": depth += 1
            if ch == "]": depth -= 1
            if ch == "," and depth == 0:
                ops.append(cur.strip()); cur = ""
            else:
                cur += ch
        if cur.strip(): ops.append(cur.strip())
        mods = []
        if ops:
            last = ops[-1].split()
            ops[-1] = last[0]
            mods = last[1:]
        self.ops = ops
        self.dst = []; self.src = []; self.srcC = []; self.srcAB = []
        self.passes = 0; self.states = 1; self.store_data = []; self.lds_dma = False
        op = self.op
        R = lambda i: parse_reg(ops[i]) if i < len(ops) else []
        allr = lambda a=0: [r for i in range(a, len(ops)) for r in parse_reg(ops[i])]
        if op == "s_nop":
            self.kind = "nop"; self.states = int(ops[0], 0) + 1
        elif op.startswith("v_mfma"):
            self.kind = "mfma"
            self.passes = 8 if "32x32" in op else 4
            self.dst = R(0); self.srcAB = R(1) + R(2); self.srcC = R(3)
            self.src = self.srcAB + self.srcC
        elif op.startswith("v_cmp"):
            self.kind = "valu"; self.dst = R(0); self.src = allr(1)
            if op.startswith("v_cmpx"): self.dst = self.dst + [("exec", 0)]
        elif op.startswith(("v_readfirstlane", "v_readlane")):
            self.kind = "valu"; self.dst = R(0); self.src = allr(1)
        elif op.startswith("v_permlane"):
            self.kind = "valu"; self.dst = R(0) + R(1); self.src = R(0) + R(1)
        elif op.startswith(("v_add_co", "v_sub_co", "v_addc_co", "v_subb_co")):
            self.kind = "valu"; self.dst = R(0) + R(1); self.src = allr(2)
        elif op.startswith("v_"):
            self.kind = "valu"; self.dst = R(0); self.src = allr(1)
            if op.startswith(("v_fmac", "v_mac", "v_pk_fmac")) or "_sdwa" in op or op.startswith("v_writelane"):
                self.src = self.src + R(0)
            if op.startswith("v_cndmask") and len(ops) == 3:
                self.src = self.src + [("vcc", 0)]
        elif op.startswith("ds_"):
            self.kind = "ds"
            if op.startswith(("ds_read", "ds_bpermute", "ds_permute", "ds_swizzle")):
                self.dst = R(0); self.src = allr(1)
            else:
                self.src = allr(0); self.store_data = allr(1)
        elif op.startswith(("buffer_", "global_")):
            self.kind = "vmem"
            islds = "lds" in mods or "_lds_" in op
            self.lds_dma = islds
            if op.startswith(("buffer_wbl2", "buffer_inv")):
                pass
            elif "load" in op and not islds:
                self.dst = R(0); self.src = allr(1)
            elif islds:
                self.src = allr(0) + [("m0", 0)]
            elif op.startswith("buffer_store") or op.startswith("buffer_atomic"):
                self.src = allr(0); self.store_data = R(0)
                if "sc0" in mods and "atomic" in op: self.dst = R(0)
            elif op.startswith("global_store"):
                self.src = allr(0); self.store_data = R(1)
            elif op.startswith("global_atomic"):
                if "sc0" in mods:
                    self.dst = R(0); self.src = allr(1)
                else:
                    self.src = allr(0); self.store_data = R(1)
            else:
                self.src = allr(0)
        elif op.startswith("s_"):
            self.kind = "salu"
            if op.startswith(("s_cmp", "s_cbranch", "s_branch", "s_waitcnt", "s_barrier", "s_endpgm", "s_setprio", "s_sleep", "s_bitcmp")):
                self.src = allr(0)
            else:
                self.dst = R(0); self.src = allr(1)
                if "saveexec" in op: self.dst = self.dst + [("exec", 0)]
        else:
            raise ValueError("unknown instruction: " + text)
    @property
    def wide_store(self):
        return self.kind == "vmem" and self.store_data and ("x4" in self.op or "x3" in self.op)

def _ov(a, b):
    return bool(set(a) & set(b))
def _vonly(regs):
    return [r for r in regs if r[0] in ("v", "a")]
def _sonly(regs):
    return [r for r in regs if r[0] in ("s", "vcc")]

def required(p, c):
    need = 0
    if p.kind == "valu":
        pv = _vonly(p.dst); ps = _sonly(p.dst)
        if pv:
            if c.kind == "mfma" and _ov(pv, c.src): need = max(need, 2)
            if c.kind == "valu":
                if c.op.startswith(("v_readfirstlane", "v_readlane")) and _ov(pv, c.src): need = max(need, 1)
                if c.op.startswith("v_permlane") and _ov(pv, c.src): need = max(need, 2)
                if ("dpp" in c.op or "quad_perm" in c.text or "row_" in c.text) and _ov(pv, c.src): need = max(need, 2)
                if p.op.startswith(TRANS) and _ov(pv, c.src): need = max(need, 1)
                if "_sdwa" in p.op and _ov(pv, c.src + c.dst): need = max(need, 1)
        if ps:
            if c.kind == "valu" and _ov(ps, c.src):
                need = max(need, 4 if c.op.startswith(("v_readlane", "v_writelane")) else 2)
            if c.kind == "vmem" and _ov(ps, c.src): need = max(need, 5)
            if c.kind == "salu" and _ov(ps, c.src): need = max(need, 1)
        if ("exec", 0) in p.dst:
            if c.kind == "mfma": need = max(need, 4)
            if c.kind == "valu": need = max(need, 5)
    if p.kind == "mfma":
        big = p.passes == 8
        if c.kind == "mfma":
            if _ov(p.dst, c.srcAB): need = max(need, 12 if big else 8)
            if _ov(p.dst, c.srcC):
                if not (p.dst == c.srcC and p.passes == c.passes): need = max(need, 10 if big else 6)
            elif _ov(p.dst, c.dst):
                need = max(need, 10 if big else 6)
        else:
            if _ov(p.dst, _vonly(c.src) + _vonly(c.dst)): need = max(need, 12 if big else 8)
            if c.kind == "valu" and _ov(p.srcC, c.dst): need = max(need, 7 if big else 3)
    if p.kind == "salu":
        if ("m0", 0) in p.dst and c.lds_dma: need = max(need, 1)
    if p.wide_store:
        if _ov(p.store_data, c.dst): need = max(need, 2 if c.kind == "valu" else 1)
    return need

MAXW = 12
_cache = {}
def _ins(s):
    r = _cache.get(s)
    if r is None:
        r = _cache[s] = Ins(s)
    return r

def fix_hazards(lines, verbose=False):
    items = []
    label_at = {}
    order = []
    pend = []
    for l in lines:
        s = l.split(";")[0].strip()
        if not s or s.startswith("."):
            order.append(("raw", l)); continue
        if s.endswith(":"):
            order.append(("raw", l)); pend.append(s[:-1]); continue
        for p in pend: label_at[p] = len(items)
        pend = []
        order.append(("ins", len(items)))
        items.append((l, _ins(s)))
    for p in pend: label_at[p] = len(items)
    n = len(items)
    preds = [[] for _ in range(n + 1)]
    for k, (l, ins) in enumerate(items):
        if ins.op == "s_branch":
            preds[label_at[ins.ops[0]]].append(k)
        elif ins.op.startswith("s_cbranch"):
            preds[label_at[ins.ops[0]]].append(k); preds[k + 1].append(k)
        elif ins.op != "s_endpgm":
            preds[k + 1].append(k)
    extra = [0] * (n + 1)
    for k, (l, c) in enumerate(items):
        if c.kind == "nop": continue
        stack = [(p, 0) for p in preds[k]]
        seen = {}
        worst = 0; who = None
        while stack:
            p, d = stack.pop()
            if d >= MAXW or seen.get(p, 99) <= d: continue
            seen[p] = d
            pi = items[p][1]
            r = required(pi, c)
            if r - d > worst:
                worst = r - d; who = pi.text
            for pp in preds[p]:
                stack.append((pp, d + pi.states + extra[p]))
        if worst:
            extra[k] = worst
            if verbose: print(f"hazard: +{worst} between [{who}] and [{c.text}]")
    out = []; cnt = 0
    for kind, x in order:
        if kind == "raw":
            out.append(x)
        else:
            if extra[x]:
                out.append(f"s_nop {extra[x]-1}"); cnt += 1
            out.append(items[x][0])
    return out, cnt
```

```python
from asmlib import *
import layout as L

ARG = dict(A_x=0, wqkv=8, wo=16, B_x=24, w_gate=32, w_up=40, w_down=48, gate_w=56, out=64, dbg=72, ws=80)
SIZE = dict(A_x=2621440, wqkv=2457600, wo=819200, B_x=2621440, w_gate=2211840, w_up=2211840, w_down=2211840,
            gate_w=1280, out=2621440, dbg=256, ws=L.WS_USED)

def load_srds(a, pairs):
    for n, s in pairs:
        a(f"s_load_dwordx2 {sr(s,2)}, s[0:1], {ARG[n]}")
    for n, s in pairs:
        a(f"s_mov_b32 s{s+2}, {SIZE[n]}")
        a(f"s_mov_b32 s{s+3}, 0x20000")
    a("s_waitcnt lgkmcnt(0)")

def mfma32(d, x, y, c=None):
    cc = vr(d, 16) if c is None else c
    return f"v_mfma_f32_32x32x16_bf16 {vr(d,16)}, {vr(x,4)}, {vr(y,4)}, {cc}"

def kernel_text(name, a, vgprs, sgprs=96):
    lines, n = fix_hazards(a.lines)
    body = "\n".join((l if l.endswith(":") or l.startswith(".") else "    " + l) for l in lines)
    head = f""".text
.globl {name}
.p2align 8
.type {name},@function
{name}:
"""
    desc = f"""
.section .rodata,"a"
.p2align 6
.amdhsa_kernel {name}
  .amdhsa_next_free_vgpr {vgprs}
  .amdhsa_next_free_sgpr {sgprs}
  .amdhsa_accum_offset {(vgprs+3)//4*4}
  .amdhsa_group_segment_fixed_size 0
  .amdhsa_kernarg_size 88
  .amdhsa_user_sgpr_count 2
  .amdhsa_user_sgpr_kernarg_segment_ptr 1
  .amdhsa_system_sgpr_workgroup_id_x 1
  .amdhsa_float_denorm_mode_32 3
.end_amdhsa_kernel
"""
    return head + body + "\n" + desc
```

```python
from common import *

SLOT = 22528
HALF = 11264
SCR = 45056
LTHR = 0x53800000

def attn_program(a, wg_reg="s2", pre="at", finish=None):
    SWS = 4
    sWAVE, sHEAD, sQB, sQG, sKH = 16, 17, 18, 19, 20
    sD, sI, sL = 24, 28, 32
    sWSL, sRD, sST, sT0, sT1, sT2, sT3 = 36, 37, 38, 40, 41, 42, 43
    sTT = 39
    vLANE, vK0, vK1, vV, vDM, vG = 1, 2, 3, 44, 45, 46
    Q = [(4, 8), (12, 16)]
    KF0, KF1, VA0, VA1, P0, P1 = 20, 24, 28, 32, 36, 40
    S = [48, 64]; O = [80, 96]
    vT = 112

    a(f"v_lshrrev_b32 v{vT}, 6, v0")
    a(f"v_and_b32 v{vLANE}, 63, v0")
    a(f"v_readfirstlane_b32 s{sWAVE}, v{vT}")
    load_srds(a, [("ws", SWS)])
    a(f"""
    s_and_b32 s{sT0}, {wg_reg}, 7
    s_lshr_b32 s{sT1}, {wg_reg}, 3
    s_lshl_b32 s{sHEAD}, s{sT0}, 2
    s_and_b32 s{sT2}, s{sT1}, 3
    s_add_u32 s{sHEAD}, s{sHEAD}, s{sT2}
    s_lshr_b32 s{sQB}, s{sT1}, 2
    s_and_b32 s{sQG}, s{sWAVE}, 3
    s_lshr_b32 s{sKH}, s{sWAVE}, 2
    v_lshlrev_b32 v{vDM}, 4, v{vLANE}
    """)
    a(f"""
    s_lshl_b32 s{sT0}, s{sQB}, 3
    s_lshl_b32 s{sT1}, s{sQG}, 1
    s_add_u32 s{sT0}, s{sT0}, s{sT1}
    s_add_u32 s{sTT}, s{sT0}, s{sKH}
    s_mul_i32 s{sT0}, s{sT0}, 1280
    s_mul_i32 s{sT1}, s{sHEAD}, 81920
    s_add_u32 s{sT0}, s{sT0}, s{sT1}
    s_add_u32 s{sT0}, s{sT0}, {L.QF}
    v_and_b32 v{vT}, 31, v{vLANE}
    v_lshlrev_b32 v{vT+1}, 3, v{vT}
    v_lshlrev_b32 v{vT+2}, 2, v{vT}
    buffer_load_dwordx4 {vr(Q[0][0],4)}, v{vDM}, {sr(SWS,4)}, s{sT0} offen
    buffer_load_dwordx2 {vr(Q[0][1],2)}, v{vT+1}, {sr(SWS,4)}, s{sT0} offen offset:1024
    buffer_load_dwordx4 {vr(Q[1][0],4)}, v{vDM}, {sr(SWS,4)}, s{sT0} offen offset:1280
    buffer_load_dwordx2 {vr(Q[1][1],2)}, v{vT+1}, {sr(SWS,4)}, s{sT0} offen offset:2304
    s_lshl_b32 s{sT1}, s{sTT}, 7
    s_add_u32 s{sT1}, s{sT1}, {L.GF}
    buffer_load_dword v{vG}, v{vT+2}, {sr(SWS,4)}, s{sT1} offen
    """)
    for i in range(3):
        a(f"""
        s_mul_i32 s{sT0}, s{sQG}, 3
        s_add_u32 s{sT0}, s{sT0}, {i}
        s_min_u32 s{sT0}, s{sT0}, 10
        s_lshl_b32 s{sT1}, s{sT0}, 10
        s_mul_i32 s{sT2}, s{sKH}, {HALF}
        s_add_u32 s{sL+i}, s{sT1}, s{sT2}
        s_mul_i32 s{sT2}, s{sHEAD}, 81920
        s_mul_i32 s{sT3}, s{sKH}, {32*1280}
        s_add_u32 s{sT2}, s{sT2}, s{sT3}
        s_add_u32 s{sT2}, s{sT2}, s{sT1}
        s_add_u32 s{sD+i}, s{sT2}, {L.KF}
        s_mul_i32 s{sT2}, s{sHEAD}, 98304
        s_mul_i32 s{sT3}, s{sKH}, {32*1536}
        s_add_u32 s{sT2}, s{sT2}, s{sT3}
        s_add_u32 s{sT2}, s{sT2}, s{sT1}
        s_add_u32 s{sT2}, s{sT2}, {L.VF - 5*1024}
        s_mov_b32 s{sT3}, 6144
        s_cmp_lt_u32 s{sT0}, 5
        s_cselect_b32 s{sD+i}, s{sD+i}, s{sT2}
        s_cselect_b32 s{sI+i}, 5120, s{sT3}
        """)
    def dma():
        for i in range(3):
            a(f"s_add_u32 m0, s{sWSL}, s{sL+i}")
            a(f"s_nop 0")
            a(f"buffer_load_dwordx4 v{vDM}, {sr(SWS,4)}, s{sD+i} offen lds")
            a(f"s_add_u32 s{sD+i}, s{sD+i}, s{sI+i}")
        a(f"s_add_u32 s{sWSL}, s{sWSL}, {SLOT}")
        a(f"s_cmp_eq_u32 s{sWSL}, {3*SLOT}")
        a(f"s_cselect_b32 s{sWSL}, 0, s{sWSL}")
    a(f"s_mov_b32 s{sWSL}, 0")
    dma(); dma()
    a(f"""
    s_mul_i32 s{sT0}, s{sKH}, {HALF}
    v_add_u32 v{vK0}, s{sT0}, v{vDM}
    v_add_u32 v{vK1}, s{sT0}, v{vT+1}
    v_add_u32 v{vK1}, 1024, v{vK1}
    v_and_b32 v{vT+3}, 31, v{vLANE}
    v_mov_b32 v{vT+4}, 20
    v_cmp_lt_u32 vcc, 23, v{vT+3}
    v_cndmask_b32 v{vT+4}, v{vT+3}, v{vT+4}, vcc
    v_mov_b32 v{vT+5}, 16
    v_cmp_lt_u32 vcc, 27, v{vT+3}
    v_cndmask_b32 v{vT+4}, v{vT+4}, v{vT+5}, vcc
    v_lshlrev_b32 v{vT+4}, 4, v{vT+4}
    v_lshrrev_b32 v{vT+5}, 5, v{vLANE}
    v_mul_u32_u24 v{vT+5}, 384, v{vT+5}
    v_add_u32 v{vT+6}, v{vT+4}, v{vT+5}
    s_add_u32 s{sT0}, s{sT0}, 5120
    v_add_u32 v{vV}, s{sT0}, v{vT+6}
    v_mov_b32 v{KF1+2}, 0x3f803f80
    v_mov_b32 v{KF1+3}, 0
    v_cmp_gt_u32 s[44:45], 32, v{vLANE}
    """)
    for r in range(16):
        a(f"v_mov_b32 v{O[0]+r}, 0")
        a(f"v_mov_b32 v{O[1]+r}, 0")
    for r in range(4):
        a(f"v_mov_b32 v{P1+r}, 0")
        a(f"v_mov_b32 v{VA1+r}, 0")
    a("s_waitcnt vmcnt(3)")
    for q in range(2):
        f1 = Q[q][1]
        a(f"v_cndmask_b32 v{f1}, 0, v{f1}, s[44:45]")
        a(f"v_cndmask_b32 v{f1+1}, 0, v{f1+1}, s[44:45]")
        a(f"v_mov_b32 v{f1+2}, 0")
        a(f"v_mov_b32 v{f1+3}, 0")
    a("s_barrier")
    a(f"""
    v_add_u32 v{vT+7}, 1024, v{vT+1}
    ds_read_b128 {vr(KF0,4)}, v{vDM}
    ds_read_b64 {vr(KF1,2)}, v{vT+7}
    s_waitcnt lgkmcnt(0)
    """)
    for q in range(2):
        a(mfma32(S[q], KF0, Q[q][0], "0"))
        a(mfma32(S[q], KF1, Q[q][1]))
    def set_bias(src_max, f1, t):
        a(f"""
        v_mov_b32 v{t}, v{src_max}
        v_permlane32_swap_b32 v{src_max}, v{t}
        v_max_f32 v{t}, v{src_max}, v{t}
        v_xor_b32 v{t}, 0x80000000, v{t}
        v_and_b32 v{t+1}, 0xffff0000, v{t}
        v_sub_f32 v{t}, v{t}, v{t+1}
        v_and_b32 v{t+2}, 0xffff0000, v{t}
        v_sub_f32 v{t}, v{t}, v{t+2}
        v_lshrrev_b32 v{t+1}, 16, v{t+1}
        v_or_b32 v{t+1}, v{t+1}, v{t+2}
        v_lshrrev_b32 v{t}, 16, v{t}
        v_cndmask_b32 v{f1+2}, v{t}, v{t+1}, s[44:45]
        """)
    def max16(dst, b, init=None):
        if init is None:
            a(f"v_max3_f32 v{dst}, v{b}, v{b+1}, v{b+2}")
            rest = list(range(3, 16))
        else:
            rest = list(range(0, 16))
        while len(rest) >= 2:
            a(f"v_max3_f32 v{dst}, v{dst}, v{b+rest[0]}, v{b+rest[1]}")
            rest = rest[2:]
        if rest:
            a(f"v_max_f32 v{dst}, v{dst}, v{b+rest[0]}")
    for q in range(2):
        max16(vT+8, S[q])
        set_bias(vT+8, Q[q][1], vT+9)
    a(f"""
    ds_read_b128 {vr(KF0,4)}, v{vK0}
    ds_read_b64 {vr(KF1,2)}, v{vK1}
    ds_read_b128 {vr(VA0,4)}, v{vV}
    s_waitcnt lgkmcnt(1)
    """)
    a(mfma32(S[0], KF0, Q[0][0], "0"))
    a(mfma32(S[0], KF1, Q[0][1]))
    a(f"s_mov_b32 s{sST}, 0")
    a(f"s_mov_b32 s{sRD}, 0")
    a(f"s_mov_b32 s46, {SLOT}")
    a("s_nop 7")
    a("s_nop 3")
    a(".p2align 6")
    a.label(f"{pre}_loop")
    for i in range(8):
        kt, q = i >> 1, i & 1
        s = S[q]; sn = S[1-q]
        ex = lambda lo, hi: [a(f"v_exp_f32 v{s+j}, v{s+j}") for j in range(lo, hi)]
        cv = lambda lo, hi: [a(f"v_cvt_pk_bf16_f32 v{P0+j}, v{s+2*j}, v{s+2*j+1}") for j in range(lo, hi)]
        if q == 1: a("s_waitcnt lgkmcnt(2)")
        a(mfma32(O[1-q], VA1, P1))
        if q == 0:
            a(f"ds_read_b128 {vr(VA1,4)}, v{vV} offset:{kt*1536 + 768}")
        ex(0, 5)
        if q == 1: a("s_waitcnt lgkmcnt(1)")
        a(mfma32(sn, KF0, Q[1-q][0], "0"))
        ex(5, 8); cv(0, 4)
        if q == 1: a("s_waitcnt lgkmcnt(0)")
        a(mfma32(sn, KF1, Q[1-q][1]))
        if q == 0:
            if kt == 3:
                a(f"s_add_u32 s{sRD}, s{sRD}, 1")
                a(f"s_cmp_eq_u32 s{sRD}, 3")
                a(f"s_cselect_b32 s{sT0}, {(-2*SLOT) & 0xffffffff}, s46")
                a(f"s_cselect_b32 s{sRD}, 0, s{sRD}")
                a(f"v_add_u32 v{vK0}, s{sT0}, v{vK0}")
                a(f"v_add_u32 v{vK1}, s{sT0}, v{vK1}")
                kn = 0
            else:
                kn = kt + 1
            a(f"ds_read_b128 {vr(KF0,4)}, v{vK0} offset:{kn*1280}")
            a(f"ds_read_b64 {vr(KF1,2)}, v{vK1} offset:{kn*1280}")
        ex(8, 13)
        if q == 0: a("s_waitcnt lgkmcnt(3)")
        a(mfma32(O[q], VA0, P0))
        if q == 1:
            if kt == 3:
                a(f"v_add_u32 v{vV}, s{sT0}, v{vV}")
                kn = 0
            else:
                kn = kt + 1
            a(f"ds_read_b128 {vr(VA0,4)}, v{vV} offset:{kn*1536}")
        ex(13, 16); cv(4, 8)
        if i == 3:
            a("s_waitcnt vmcnt(0)")
            a("s_barrier")
            a(f"s_cmp_ge_u32 s{sST}, 6")
            a(f"s_cbranch_scc1 {pre}_nodma")
            dma()
            a.label(f"{pre}_nodma")
    a(f"s_add_u32 s{sST}, s{sST}, 1")
    a(f"s_cmp_lt_u32 s{sST}, 8")
    a(f"s_cbranch_scc1 {pre}_loop")
    a(mfma32(O[1], VA1, P1))
    F = 48
    QX = 72
    a(f"""
    s_mul_i32 s{sT0}, s{sWAVE}, 3072
    s_add_u32 s{sT0}, s{sT0}, {SCR}
    v_add_u32 v{vT+8}, s{sT0}, v{vDM}
    s_xor_b32 s{sT1}, s{sWAVE}, 4
    s_mul_i32 s{sT1}, s{sT1}, 3072
    s_add_u32 s{sT1}, s{sT1}, {SCR}
    v_add_u32 v{vT+9}, s{sT1}, v{vDM}
    s_cmp_eq_u32 s{sKH}, 0
    s_cbranch_scc0 {pre}_m1
    """)
    for kh in range(2):
        if kh == 1: a.label(f"{pre}_m1")
        for i in range(3):
            a(f"ds_write_b128 v{vT+8}, {vr(O[1-kh]+4*i,4)} offset:{i*1024}")
        a("s_waitcnt lgkmcnt(0)")
        a("s_barrier")
        for i in range(3):
            a(f"ds_read_b128 {vr(F+12+4*i,4)}, v{vT+9} offset:{i*1024}")
        for i in range(4):
            a(f"v_mov_b32 v{QX+i}, v{Q[kh][0]+i}")
            a(f"v_mov_b32 v{QX+4+i}, v{Q[kh][1]+i}")
        a("s_waitcnt lgkmcnt(0)")
        for i in range(12):
            a(f"v_add_f32 v{F+i}, v{O[kh]+i}, v{F+12+i}")
        if kh == 0: a(f"s_branch {pre}_merged")
    a.label(f"{pre}_merged")
    def rowsum(dst):
        a(f"v_mov_b32 v{dst}, v{F+8}")
        a(f"v_mov_b32 v{dst+1}, v{F+8}")
        a(f"v_permlane32_swap_b32 v{dst}, v{dst+1}")
    rowsum(vT+10)
    a(f"""
    s_mov_b32 s{sT0}, {LTHR}
    v_cmp_nle_f32 vcc, v{vT+11}, s{sT0}
    s_nop 1
    s_cbranch_vccnz {pre}_slow
    """)
    a.label(f"{pre}_fin")
    a(f"""
    v_rcp_f32 v{vT+11}, v{vT+11}
    s_nop 0
    v_mul_f32 v{vT+11}, v{vG}, v{vT+11}
    """)
    for i in range(12):
        a(f"v_mul_f32 v{F+i}, v{F+i}, v{vT+11}")
    for i in range(6):
        a(f"v_cvt_pk_bf16_f32 v{P0+i}, v{F+2*i}, v{F+2*i+1}")
    a(f"""
    s_mul_i32 s{sT0}, s{sTT}, 40960
    s_add_u32 s{sT0}, s{sT0}, {L.OF}
    s_lshl_b32 s{sT1}, s{sHEAD}, 10
    s_add_u32 s{sT1}, s{sT1}, s{sT0}
    buffer_store_dwordx4 {vr(P0,4)}, v{vDM}, {sr(SWS,4)}, s{sT1} offen {"sc1" if finish else ""}
    s_lshr_b32 s{sT1}, s{sHEAD}, 2
    s_add_u32 s{sT1}, s{sT1}, 32
    s_lshl_b32 s{sT1}, s{sT1}, 10
    s_add_u32 s{sT1}, s{sT1}, s{sT0}
    s_lshl_b32 s{sT2}, s{sHEAD}, 8
    s_and_b32 s{sT2}, s{sT2}, 512
    s_add_u32 s{sT1}, s{sT1}, s{sT2}
    s_lshl_b32 s{sT2}, s{sHEAD}, 3
    s_and_b32 s{sT2}, s{sT2}, 8
    s_add_u32 s{sT1}, s{sT1}, s{sT2}
    s_mov_b64 exec, s[44:45]
    buffer_store_dwordx2 {vr(P0+4,2)}, v{vDM}, {sr(SWS,4)}, s{sT1} offen {"sc1" if finish else ""}
    s_mov_b64 exec, -1
    """)
    if finish: finish(a, sTT, sHEAD)
    a("s_endpgm")
    a.label(f"{pre}_slow")
    MX = vT+8
    a(f"""
    s_mul_i32 s{sT0}, s{sHEAD}, 81920
    s_add_u32 s{sT0}, s{sT0}, {L.KF}
    v_and_b32 v{vT+1}, 31, v{vLANE}
    v_lshlrev_b32 v{vT+1}, 3, v{vT+1}
    v_mov_b32 v{QX+6}, 0
    v_mov_b32 v{MX}, 0xff800000
    s_mov_b32 s{sST}, 0
    """)
    a.label(f"{pre}_s1")
    a(f"""
    buffer_load_dwordx4 {vr(KF0,4)}, v{vDM}, {sr(SWS,4)}, s{sT0} offen
    buffer_load_dwordx2 {vr(KF1,2)}, v{vT+1}, {sr(SWS,4)}, s{sT0} offen offset:1024
    s_waitcnt vmcnt(0)
    """)
    a(mfma32(O[0], KF0, QX, "0"))
    a(mfma32(O[0], KF1, QX+4))
    max16(MX, O[0], init=True)
    a(f"""
    s_add_u32 s{sT0}, s{sT0}, 1280
    s_add_u32 s{sST}, s{sST}, 1
    s_cmp_lt_u32 s{sST}, 64
    s_cbranch_scc1 {pre}_s1
    """)
    set_bias(MX, QX+4, vT+9)
    a(f"""
    s_mul_i32 s{sT0}, s{sHEAD}, 81920
    s_add_u32 s{sT0}, s{sT0}, {L.KF}
    s_mul_i32 s{sT1}, s{sHEAD}, 98304
    s_add_u32 s{sT1}, s{sT1}, {L.VF}
    s_mov_b32 s{sST}, 0
    """)
    for r in range(16):
        a(f"v_mov_b32 v{O[1]+r}, 0")
    a.label(f"{pre}_s2")
    a(f"""
    buffer_load_dwordx4 {vr(KF0,4)}, v{vDM}, {sr(SWS,4)}, s{sT0} offen
    buffer_load_dwordx2 {vr(KF1,2)}, v{vT+1}, {sr(SWS,4)}, s{sT0} offen offset:1024
    buffer_load_dwordx4 {vr(VA0,4)}, v{vT+6}, {sr(SWS,4)}, s{sT1} offen
    buffer_load_dwordx4 {vr(VA1,4)}, v{vT+6}, {sr(SWS,4)}, s{sT1} offen offset:768
    s_waitcnt vmcnt(0)
    """)
    a(mfma32(O[0], KF0, QX, "0"))
    a(mfma32(O[0], KF1, QX+4))
    for j in range(16): a(f"v_exp_f32 v{O[0]+j}, v{O[0]+j}")
    a("s_nop 0")
    for j in range(8): a(f"v_cvt_pk_bf16_f32 v{P0+j}, v{O[0]+2*j}, v{O[0]+2*j+1}")
    a(mfma32(O[1], VA0, P0))
    a(mfma32(O[1], VA1, P1))
    a(f"""
    s_add_u32 s{sT0}, s{sT0}, 1280
    s_add_u32 s{sT1}, s{sT1}, 1536
    s_add_u32 s{sST}, s{sST}, 1
    s_cmp_lt_u32 s{sST}, 64
    s_cbranch_scc1 {pre}_s2
    """)
    for i in range(12):
        a(f"v_mov_b32 v{F+i}, v{O[1]+i}")
    rowsum(vT+10)
    a(f"s_branch {pre}_fin")

def attn_kernel():
    a = Asm()
    a("s_cmp_ge_u32 s2, 256")
    a("s_cbranch_scc1 at_exit")
    attn_program(a)
    a.label("at_exit")
    a("s_endpgm")
    return kernel_text("attn_kernel", a, 128), 81920
```

```python
from common import *
from k_qkv import LOG2E

def g1_program(a, wg_reg="s2", pre="g1", done_label=None):
    SX, SG, SU, SWS = 4, 8, 12, 36
    sWAVE, sRB, sCB, sXO, sWO, sM0, sT0, sT1, sT2 = 16, 17, 18, 19, 20, 21, 22, 23, 24
    vLANE, vXO0, vXO1, vGO, vUO = 1, 2, 3, 4, 5
    vXA = 8
    vWA = 12
    vT = 16
    ACC = 32
    FA, FB = 96, 112
    XS = [0, 16384]
    WS_ = [32768, 49152, 65536]
    done = done_label or f"{pre}_done"
    a(f"v_lshrrev_b32 v{vT}, 6, v0")
    a(f"v_and_b32 v{vLANE}, 63, v0")
    a(f"v_readfirstlane_b32 s{sWAVE}, v{vT}")
    load_srds(a, [("A_x", SX), ("w_gate", SG), ("w_up", SU), ("ws", SWS)])
    a(f"""
    s_and_b32 s{sT0}, {wg_reg}, 7
    s_lshr_b32 s{sT1}, {wg_reg}, 3
    s_and_b32 s{sRB}, s{sT0}, 3
    s_lshl_b32 s{sRB}, s{sRB}, 2
    s_and_b32 s{sT2}, s{sT1}, 3
    s_add_u32 s{sRB}, s{sRB}, s{sT2}
    s_lshr_b32 s{sCB}, s{sT0}, 2
    s_mul_i32 s{sCB}, s{sCB}, 7
    s_lshr_b32 s{sT2}, s{sT1}, 2
    s_cmp_eq_u32 s{sT2}, 7
    s_cbranch_scc1 {done}
    s_add_u32 s{sCB}, s{sCB}, s{sT2}
    s_mul_i32 s{sXO}, s{sRB}, {128*1280}
    s_lshl_b32 s{sWO}, s{sCB}, 8
    s_lshl_b32 s{sM0}, s{sWAVE}, 11
    """)
    for jj, v in ((0, vXO0), (1, vXO1)):
        a(f"""
        v_lshrrev_b32 v{vT}, 3, v{vLANE}
        s_lshl_b32 s{sT0}, s{sWAVE}, 4
        s_add_u32 s{sT0}, s{sT0}, {8*jj}
        v_add_u32 v{vT}, s{sT0}, v{vT}
        v_mul_u32_u24 v{vT}, 1280, v{vT}
        v_lshrrev_b32 v{vT+1}, 4, v{vLANE}
        v_add_u32 v{vT+1}, {4*jj}, v{vT+1}
        v_and_b32 v{vT+2}, 7, v{vLANE}
        v_xor_b32 v{vT+1}, v{vT+1}, v{vT+2}
        v_lshlrev_b32 v{vT+1}, 4, v{vT+1}
        v_add_u32 v{v}, v{vT}, v{vT+1}
        """)
    a(f"""
    v_lshrrev_b32 v{vT}, 4, v{vLANE}
    s_lshl_b32 s{sT0}, s{sWAVE}, 2
    v_add_u32 v{vT+1}, s{sT0}, v{vT}
    v_mul_u32_u24 v{vT+1}, 3456, v{vT+1}
    v_bfe_u32 v{vT+2}, v{vLANE}, 1, 3
    v_lshlrev_b32 v{vT+3}, 1, v{vT}
    v_xor_b32 v{vT+2}, v{vT+2}, v{vT+3}
    v_and_b32 v{vT+3}, 1, v{vLANE}
    v_lshlrev_b32 v{vT+3}, 4, v{vT+3}
    v_lshlrev_b32 v{vT+4}, 5, v{vT+2}
    v_add3_u32 v{vGO}, v{vT+1}, v{vT+4}, v{vT+3}
    v_xor_b32 v{vT+2}, 1, v{vT+2}
    v_lshlrev_b32 v{vT+4}, 5, v{vT+2}
    v_add3_u32 v{vUO}, v{vT+1}, v{vT+4}, v{vT+3}
    s_lshl_b32 s25, s{sWAVE}, 10
    """)
    def dma_x(st):
        for jj, v in ((0, vXO0), (1, vXO1)):
            a(f"s_add_u32 m0, s{sM0}, {XS[st % 2] + jj*1024}")
            a(f"s_add_u32 s{sT0}, s{sXO}, {st*128}")
            a(f"buffer_load_dwordx4 v{v}, {sr(SX,4)}, s{sT0} offen lds")
    def dma_w(u):
        a(f"s_add_u32 m0, s25, {WS_[u % 3]}")
        a(f"s_add_u32 s{sT0}, s{sWO}, {u*32*3456}")
        a(f"buffer_load_dwordx4 v{vGO}, {sr(SG,4)}, s{sT0} offen lds")
        a(f"s_add_u32 m0, s25, {WS_[u % 3] + 8192}")
        a(f"buffer_load_dwordx4 v{vUO}, {sr(SU,4)}, s{sT0} offen lds")
    dma_x(0); dma_w(0); dma_w(1)
    a(f"""
    v_and_b32 v{vT}, 31, v{vLANE}
    v_lshrrev_b32 v{vT+1}, 5, v{vLANE}
    s_and_b32 s{sT0}, s{sWAVE}, 1
    s_lshl_b32 s{sT0}, s{sT0}, 13
    v_lshlrev_b32 v{vT+2}, 7, v{vT}
    v_add_u32 v{vT+2}, s{sT0}, v{vT+2}
    v_bfe_u32 v{vT+3}, v{vLANE}, 1, 3
    """)
    for s in range(4):
        a(f"""
        v_or_b32 v{vT+4}, {2*s}, v{vT+1}
        v_xor_b32 v{vT+4}, v{vT+4}, v{vT+3}
        v_lshlrev_b32 v{vT+4}, 4, v{vT+4}
        v_add_u32 v{vXA+s}, v{vT+2}, v{vT+4}
        """)
    a(f"""
    v_bfe_u32 v{vT}, v{vLANE}, 2, 2
    v_lshrrev_b32 v{vT+1}, 5, v{vLANE}
    v_lshlrev_b32 v{vT+1}, 3, v{vT+1}
    v_add_u32 v{vT+1}, v{vT+1}, v{vT}
    v_lshlrev_b32 v{vT+1}, 8, v{vT+1}
    v_bfe_u32 v{vT+3}, v{vLANE}, 4, 1
    v_lshlrev_b32 v{vT+5}, 13, v{vT+3}
    v_add_u32 v{vT+1}, v{vT+1}, v{vT+5}
    v_and_b32 v{vT+4}, 3, v{vLANE}
    v_lshlrev_b32 v{vT+4}, 3, v{vT+4}
    v_add_u32 v{vT+1}, v{vT+1}, v{vT+4}
    v_lshlrev_b32 v{vT+2}, 1, v{vT}
    v_xor_b32 v{vT+2}, v{vT+2}, v{vT+3}
    s_lshr_b32 s{sT0}, s{sWAVE}, 1
    s_lshl_b32 s{sT0}, s{sT0}, 1
    """)
    for ml in range(2):
        a(f"""
        s_add_u32 s{sT1}, s{sT0}, {ml}
        v_xor_b32 v{vT+5}, s{sT1}, v{vT+2}
        v_lshlrev_b32 v{vT+5}, 5, v{vT+5}
        v_add_u32 v{vT+5}, v{vT+5}, v{vT+1}
        v_add_u32 v{vWA+ml}, 32768, v{vT+5}
        """)
    for r in range(64):
        a(f"v_mov_b32 v{ACC+r}, 0")
    def reads(u, s, F):
        xs = XS[(u // 2) % 2]; ks = (u & 1)*2 + s
        wo = WS_[u % 3] - 32768 + s*4096
        for tl in range(2):
            a(f"ds_read_b128 {vr(F+4*tl,4)}, v{vXA+ks} offset:{xs + tl*4096}")
        for ml in range(2):
            a(f"ds_read_b64_tr_b16 {vr(F+8+4*ml,2)}, v{vWA+ml} offset:{wo}")
            a(f"ds_read_b64_tr_b16 {vr(F+10+4*ml,2)}, v{vWA+ml} offset:{wo + 1024}")
    def mm(F):
        for tl in range(2):
            for ml in range(2):
                a(mfma32(ACC + 16*(2*tl+ml), F+8+4*ml, F+4*tl))
    q = ["x0", "x0", "w0", "w0", "w1", "w1"]
    for u in range(20):
        need = [f"w{u}", f"x{u//2}"]
        last = max(i for i, n in enumerate(q) if n in need)
        a(f"s_waitcnt vmcnt({len(q) - 1 - last})")
        a("s_barrier")
        reads(u, 0, FA)
        reads(u, 1, FB)
        if u % 2 == 0 and u//2 + 1 < 10:
            dma_x(u//2 + 1); q += [f"x{u//2+1}"]*2
        if u + 2 < 20:
            dma_w(u + 2); q += [f"w{u+2}"]*2
        a("s_waitcnt lgkmcnt(6)")
        mm(FA)
        a("s_waitcnt lgkmcnt(0)")
        mm(FB)
    a(f"""
    s_lshr_b32 s{sT0}, s{sWAVE}, 1
    s_lshl_b32 s{sT0}, s{sT0}, 1
    s_lshl_b32 s{sT1}, s{sCB}, 3
    s_add_u32 s{sT1}, s{sT1}, s{sT0}
    s_cmp_ge_u32 s{sT1}, 108
    s_cbranch_scc1 {done}
    s_and_b32 s{sT0}, s{sWAVE}, 1
    s_lshl_b32 s{sT0}, s{sT0}, 1
    s_lshl_b32 s{sT2}, s{sRB}, 2
    s_add_u32 s{sT2}, s{sT2}, s{sT0}
    s_mul_i32 s{sT2}, s{sT2}, 108
    s_add_u32 s{sT2}, s{sT2}, s{sT1}
    s_lshl_b32 s{sT2}, s{sT2}, 10
    s_add_u32 s{sT2}, s{sT2}, {L.HF}
    v_lshlrev_b32 v{vT}, 4, v{vLANE}
    s_mov_b32 s26, {LOG2E ^ 0x80000000}
    """)
    for tl in range(2):
        for ml in range(2):
            b = ACC + 16*(2*tl+ml)
            E = FA
            for j in range(8):
                a(f"v_mul_f32 v{E+j}, s26, v{b+j}")
            for j in range(8):
                a(f"v_exp_f32 v{E+j}, v{E+j}")
            for j in range(8):
                a(f"v_add_f32 v{E+j}, 1.0, v{E+j}")
            for j in range(8):
                a(f"v_rcp_f32 v{E+j}, v{E+j}")
            for j in range(8):
                a(f"v_mul_f32 v{b+j}, v{b+j}, v{b+8+j}")
            for j in range(8):
                a(f"v_mul_f32 v{b+j}, v{b+j}, v{E+j}")
            P = FB + 4*((2*tl+ml) & 1)
            for i in range(4):
                a(f"v_cvt_pk_bf16_f32 v{P+i}, v{b+2*i}, v{b+2*i+1}")
            a(f"s_add_u32 s{sT0}, s{sT2}, {tl*108*1024 + ml*1024}")
            a(f"buffer_store_dwordx4 {vr(P,4)}, v{vT}, {sr(SWS,4)}, s{sT0} offen")
    if done_label is None:
        a.label(done)

def g1_kernel():
    a = Asm()
    a("s_cmp_ge_u32 s2, 256")
    a("s_cbranch_scc1 g1_done")
    g1_program(a)
    a("s_endpgm")
    return kernel_text("g1_kernel", a, 128), 81920
```

```python
from common import *

def g2_program(a, wg_reg="s2", pre="g2", wait_h=None, wait_o=None):
    SD, SO, SWS, SOUT = 4, 8, 12, 44
    sWAVE, sTB, sCB, sFT, sQ, sM0, sT0, sT1, sT2, sHO, sWO = 16, 17, 18, 19, 20, 21, 22, 23, 24, 25, 26
    vLANE, vDM, vWO0, vWO1, vWA, vHA, vG = 1, 2, 3, 4, 5, 6, 8
    vT = 12
    ACC = 32
    FA, FB = 80, 96
    SLOT = 40960
    a(f"v_lshrrev_b32 v{vT}, 6, v0")
    a(f"v_and_b32 v{vLANE}, 63, v0")
    a(f"v_readfirstlane_b32 s{sWAVE}, v{vT}")
    load_srds(a, [("w_down", SD), ("wo", SO), ("ws", SWS), ("out", SOUT)])
    a(f"""
    s_and_b32 s{sT0}, {wg_reg}, 7
    s_lshr_b32 s{sT1}, {wg_reg}, 3
    s_cmp_ge_u32 s{sT1}, 30
    s_cbranch_scc1 {pre}_done
    s_mul_i32 s{sT2}, s{sT1}, 52429
    s_lshr_b32 s{sT2}, s{sT2}, 18
    s_mul_i32 s{sTB}, s{sT2}, 5
    s_sub_u32 s{sCB}, s{sT1}, s{sTB}
    s_and_b32 s{sTB}, s{sT0}, 1
    s_mul_i32 s{sTB}, s{sTB}, 5
    s_add_u32 s{sCB}, s{sCB}, s{sTB}
    s_lshr_b32 s{sTB}, s{sT0}, 1
    s_mul_i32 s{sT1}, s{sTB}, 11
    s_add_u32 s{sT1}, s{sT1}, 1
    s_lshr_b32 s{sT1}, s{sT1}, 1
    s_add_u32 s{sT0}, s{sTB}, 1
    s_mul_i32 s{sT0}, s{sT0}, 11
    s_add_u32 s{sT0}, s{sT0}, 1
    s_lshr_b32 s{sT0}, s{sT0}, 1
    s_add_u32 s{sTB}, s{sT1}, s{sT2}
    s_cmp_ge_u32 s{sTB}, s{sT0}
    s_cbranch_scc1 {pre}_done
    s_and_b32 s{sFT}, s{sWAVE}, 1
    s_lshr_b32 s{sQ}, s{sWAVE}, 1
    s_lshl_b32 s{sM0}, s{sWAVE}, 11
    v_lshlrev_b32 v{vDM}, 4, v{vLANE}
    """)
    def wrow_offsets(kind):
        for jj, v in ((0, vWO0), (1, vWO1)):
            a(f"""
            v_lshrrev_b32 v{vT}, 3, v{vLANE}
            s_lshl_b32 s{sT0}, s{sWAVE}, 4
            s_add_u32 s{sT0}, s{sT0}, {8*jj}
            v_add_u32 v{vT}, s{sT0}, v{vT}
            """)
            if kind == "seq":
                a(f"v_mov_b32 v{vT+1}, v{vT}")
            elif kind == "main":
                a(f"""
                v_lshrrev_b32 v{vT+1}, 4, v{vT}
                v_mul_u32_u24 v{vT+1}, 20, v{vT+1}
                v_and_b32 v{vT+2}, 15, v{vT}
                v_add_u32 v{vT+1}, v{vT+1}, v{vT+2}
                """)
            else:
                a(f"""
                v_lshrrev_b32 v{vT+1}, 4, v{vT}
                v_lshlrev_b32 v{vT+1}, 2, v{vT+1}
                v_bfe_u32 v{vT+2}, v{vT}, 2, 1
                v_lshlrev_b32 v{vT+2}, 1, v{vT+2}
                v_bfe_u32 v{vT+3}, v{vT}, 3, 1
                v_add3_u32 v{vT+1}, v{vT+1}, v{vT+2}, v{vT+3}
                v_mul_u32_u24 v{vT+1}, 20, v{vT+1}
                v_and_b32 v{vT+2}, 3, v{vT}
                v_add3_u32 v{vT+1}, v{vT+1}, v{vT+2}, 16
                """)
            a(f"""
            v_mul_u32_u24 v{vT+1}, 1280, v{vT+1}
            v_bfe_u32 v{vT+2}, v{vLANE}, 2, 1
            v_bfe_u32 v{vT+3}, v{vT}, 1, 1
            v_xor_b32 v{vT+2}, v{vT+2}, v{vT+3}
            v_lshlrev_b32 v{vT+2}, 6, v{vT+2}
            v_and_b32 v{vT+3}, 3, v{vLANE}
            v_lshlrev_b32 v{vT+3}, 4, v{vT+3}
            v_add3_u32 v{v}, v{vT+1}, v{vT+2}, v{vT+3}
            """)
    wrow_offsets("seq")
    a(f"""
    s_lshl_b32 s{sWO}, s{sCB}, 7
    s_mul_i32 s{sHO}, s{sTB}, {3*108*1024}
    s_lshl_b32 s{sT0}, s{sWAVE}, 10
    s_add_u32 s{sHO}, s{sHO}, s{sT0}
    s_add_u32 s{sHO}, s{sHO}, {L.HF}
    s_lshl_b32 s27, s{sWAVE}, 10
    s_mul_i32 s28, s{sTB}, {3*40*1024}
    s_add_u32 s28, s28, s27
    s_add_u32 s28, s28, {L.OF}
    """)
    NST = 19
    def dma(st):
        sl = (st % 2) * SLOT
        if st < 14:
            srd, so = SD, st*128*1280
        elif st < 18:
            srd, so = SO, (st-14)*8*20*1280
        else:
            srd, so = SO, 0
        for jj, v in ((0, vWO0), (1, vWO1)):
            a(f"s_add_u32 m0, s{sM0}, {sl + jj*1024}")
            a(f"s_add_u32 s{sT0}, s{sWO}, {so}")
            a(f"buffer_load_dwordx4 v{v}, {sr(srd,4)}, s{sT0} offen lds")
        for tt in range(3):
            a(f"s_add_u32 m0, s27, {sl + 16384 + tt*8192}")
            if st < 14:
                a(f"s_add_u32 s{sT0}, s{sHO}, {tt*108*1024 + st*8*1024}")
            else:
                a(f"s_add_u32 s{sT0}, s28, {tt*40*1024 + (st-14)*8*1024}")
            a(f"buffer_load_dwordx4 v{vDM}, {sr(SWS,4)}, s{sT0} offen lds")
    if wait_h: wait_h(a, sTB)
    dma(0)
    a(f"""
    v_and_b32 v{vT}, 31, v{vLANE}
    v_lshlrev_b32 v{vT}, 2, v{vT}
    s_mul_i32 s{sT0}, s{sTB}, 384
    s_add_u32 s{sT0}, s{sT0}, {L.GF}
    """)
    for tt in range(3):
        a(f"buffer_load_dword v{vG+tt}, v{vT}, {sr(SWS,4)}, s{sT0} offen offset:{tt*128}")
    a(f"""
    v_bfe_u32 v{vT}, v{vLANE}, 2, 2
    v_lshrrev_b32 v{vT+1}, 5, v{vLANE}
    v_lshlrev_b32 v{vT+1}, 2, v{vT+1}
    v_add_u32 v{vT+1}, v{vT+1}, v{vT}
    v_lshlrev_b32 v{vT+1}, 7, v{vT+1}
    v_lshrrev_b32 v{vT+2}, 1, v{vT}
    v_xor_b32 v{vT+2}, s{sFT}, v{vT+2}
    v_lshlrev_b32 v{vT+2}, 6, v{vT+2}
    v_bfe_u32 v{vT+3}, v{vLANE}, 4, 1
    v_lshlrev_b32 v{vT+3}, 5, v{vT+3}
    v_and_b32 v{vT+4}, 3, v{vLANE}
    v_lshlrev_b32 v{vT+4}, 3, v{vT+4}
    v_add3_u32 v{vT+1}, v{vT+1}, v{vT+2}, v{vT+3}
    s_lshl_b32 s{sT0}, s{sQ}, 11
    v_add3_u32 v{vWA}, v{vT+1}, v{vT+4}, s{sT0}
    s_lshl_b32 s{sT0}, s{sQ}, 10
    s_add_u32 s{sT0}, s{sT0}, 16384
    v_add_u32 v{vHA}, s{sT0}, v{vDM}
    """)
    for r in range(48):
        a(f"v_mov_b32 v{ACC+r}, 0")
    def reads(st, half, F):
        sl = (st % 2) * SLOT
        a(f"ds_read_b64_tr_b16 {vr(F,2)}, v{vWA} offset:{sl + half*8192}")
        a(f"ds_read_b64_tr_b16 {vr(F+2,2)}, v{vWA} offset:{sl + half*8192 + 1024}")
        for tt in range(3):
            a(f"ds_read_b128 {vr(F+4+4*tt,4)}, v{vHA} offset:{sl + tt*8192 + half*4096}")
    def mm(F):
        for tt in range(3):
            a(mfma32(ACC + 16*tt, F, F+4+4*tt))
    for st in range(NST):
        a("s_waitcnt vmcnt(0)")
        a("s_barrier")
        nxt = st + 1
        if nxt == 14:
            wrow_offsets("main")
        if nxt == 18:
            wrow_offsets("tail")
        reads(st, 0, FA)
        if st != 13:
            reads(st, 1, FB)
        if nxt < NST:
            if nxt == 14 and wait_o: wait_o(a, sTB)
            dma(nxt)
        if st != 13:
            a("s_waitcnt lgkmcnt(5)")
            mm(FA)
            a("s_waitcnt lgkmcnt(0)")
            mm(FB)
        else:
            a("s_waitcnt lgkmcnt(0)")
            mm(FA)
            for tt in range(3):
                a(f"v_sub_f32 v{vG+tt}, 1.0, v{vG+tt}")
            for tt in range(3):
                for r in range(16):
                    a(f"v_mul_f32 v{ACC+16*tt+r}, v{ACC+16*tt+r}, v{vG+tt}")
    a("s_barrier")
    a(f"""
    s_cmp_eq_u32 s{sQ}, 1
    s_cbranch_scc1 {pre}_r1
    s_cmp_eq_u32 s{sQ}, 2
    s_cbranch_scc1 {pre}_r2
    s_cmp_eq_u32 s{sQ}, 3
    s_cbranch_scc1 {pre}_r3
    """)
    R = 80
    for q in range(4):
        if q: a.label(f"{pre}_r{q}")
        a(f"s_mul_i32 s{sT0}, s{sFT}, 9216")
        a(f"v_add_u32 v{vT}, s{sT0}, v{vDM}")
        for dq in range(4):
            if dq == q: continue
            src = q if q < dq else q - 1
            for tt in range(3):
                a(f"ds_write_b128 v{vT}, {vr(ACC+16*tt+4*dq,4)} offset:{dq*18432 + src*3072 + tt*1024}")
        a("s_waitcnt lgkmcnt(0)")
        a("s_barrier")
        for src in range(3):
            for tt in range(3):
                a(f"ds_read_b128 {vr(R+12*src+4*tt,4)}, v{vT} offset:{q*18432 + src*3072 + tt*1024}")
        a("s_waitcnt lgkmcnt(0)")
        for tt in range(3):
            for r in range(4):
                d = vT+4+4*tt+r
                a(f"v_add_f32 v{d}, v{ACC+16*tt+4*q+r}, v{R+4*tt+r}")
                a(f"v_add_f32 v{R+12+4*tt+r}, v{R+12+4*tt+r}, v{R+24+4*tt+r}")
                a(f"v_add_f32 v{d}, v{d}, v{R+12+4*tt+r}")
        if q < 3: a(f"s_branch {pre}_store")
    a.label(f"{pre}_store")
    a(f"""
    v_and_b32 v{vT}, 31, v{vLANE}
    v_mul_u32_u24 v{vT}, 1280, v{vT}
    v_lshrrev_b32 v{vT+1}, 5, v{vLANE}
    v_lshlrev_b32 v{vT+1}, 3, v{vT+1}
    v_add_u32 v{vT}, v{vT}, v{vT+1}
    s_mul_i32 s{sT0}, s{sTB}, {96*1280}
    s_lshl_b32 s{sT1}, s{sCB}, 7
    s_add_u32 s{sT0}, s{sT0}, s{sT1}
    s_lshl_b32 s{sT1}, s{sFT}, 6
    s_add_u32 s{sT0}, s{sT0}, s{sT1}
    s_lshl_b32 s{sT1}, s{sQ}, 4
    s_add_u32 s{sT0}, s{sT0}, s{sT1}
    """)
    for tt in range(3):
        d = vT+4+4*tt
        a(f"v_cvt_pk_bf16_f32 v{R+2*tt}, v{d}, v{d+1}")
        a(f"v_cvt_pk_bf16_f32 v{R+2*tt+1}, v{d+2}, v{d+3}")
        a(f"s_add_u32 s{sT1}, s{sT0}, {tt*32*1280}")
        a(f"buffer_store_dwordx2 {vr(R+2*tt,2)}, v{vT}, {sr(SOUT,4)}, s{sT1} offen")
    a.label(f"{pre}_done")

def g2_kernel():
    a = Asm()
    a("s_cmp_ge_u32 s2, 256")
    a("s_cbranch_scc1 g2_done")
    g2_program(a)
    a("s_endpgm")
    return kernel_text("g2_kernel", a, 128), 81920
```

```python
from common import *

QSCALE = 0x3ea5290f
import struct, math
def f2u(x): return struct.unpack("<I", struct.pack("<f", x))[0]
QSCALE = f2u(20 ** -0.5 * math.log2(math.e))
LOG2E = f2u(math.log2(math.e))

def qkv_program(a, NS=2, wg_reg="s2", pre="q"):
    SX, SW, SWS = 4, 8, 12
    sWAVE, sRB, sCB, sXO, sWO, sM0, sT0, sT1, sT2 = 16, 17, 18, 19, 20, 21, 22, 23, 24
    vLANE, vXO0, vXO1, vWO = 1, 2, 3, 4
    vXA = 8
    vWA = 16
    vT = 20
    ACC = 32
    FA, FB = 64, 76
    a(f"v_lshrrev_b32 v{vT}, 6, v0")
    a(f"v_and_b32 v{vLANE}, 63, v0")
    a(f"v_readfirstlane_b32 s{sWAVE}, v{vT}")
    load_srds(a, [("A_x", SX), ("wqkv", SW), ("ws", SWS)])
    a(f"""
    s_and_b32 s{sT0}, {wg_reg}, 7
    s_lshr_b32 s{sT1}, {wg_reg}, 3
    s_and_b32 s{sRB}, s{sT0}, 3
    s_lshl_b32 s{sRB}, s{sRB}, 2
    s_and_b32 s{sT2}, s{sT1}, 3
    s_add_u32 s{sRB}, s{sRB}, s{sT2}
    s_lshr_b32 s{sCB}, s{sT0}, 2
    s_lshl_b32 s{sCB}, s{sCB}, 3
    s_lshr_b32 s{sT2}, s{sT1}, 2
    s_add_u32 s{sCB}, s{sCB}, s{sT2}
    s_cmp_eq_u32 s{sCB}, 15
    s_cbranch_scc1 {pre}_gate
    s_mul_i32 s{sXO}, s{sRB}, {128*1280}
    s_lshl_b32 s{sWO}, s{sCB}, 8
    s_lshl_b32 s{sM0}, s{sWAVE}, 11
    """)
    for jj, v in ((0, vXO0), (1, vXO1)):
        a(f"""
        v_lshrrev_b32 v{vT}, 3, v{vLANE}
        s_lshl_b32 s{sT0}, s{sWAVE}, 4
        s_add_u32 s{sT0}, s{sT0}, {8*jj}
        v_add_u32 v{vT}, s{sT0}, v{vT}
        v_mul_u32_u24 v{vT}, 1280, v{vT}
        v_lshrrev_b32 v{vT+1}, 4, v{vLANE}
        v_add_u32 v{vT+1}, {4*jj}, v{vT+1}
        v_and_b32 v{vT+2}, 7, v{vLANE}
        v_xor_b32 v{vT+1}, v{vT+1}, v{vT+2}
        v_lshlrev_b32 v{vT+1}, 4, v{vT+1}
        v_add_u32 v{v}, v{vT}, v{vT+1}
        """)
    a(f"""
    v_lshrrev_b32 v{vT}, 4, v{vLANE}
    s_lshl_b32 s{sT0}, s{sWAVE}, 3
    v_add_u32 v{vT+1}, s{sT0}, v{vT}
    v_mul_u32_u24 v{vT+1}, 3840, v{vT+1}
    v_bfe_u32 v{vT+2}, v{vLANE}, 2, 2
    v_xor_b32 v{vT+2}, v{vT+2}, v{vT}
    v_lshlrev_b32 v{vT+2}, 6, v{vT+2}
    v_and_b32 v{vT+3}, 3, v{vLANE}
    v_lshlrev_b32 v{vT+3}, 4, v{vT+3}
    v_add3_u32 v{vWO}, v{vT+1}, v{vT+2}, v{vT+3}
    """)
    def dma(st):
        sl = st % NS
        for jj, v in ((0, vXO0), (1, vXO1)):
            a(f"s_add_u32 m0, s{sM0}, {sl*32768 + jj*1024}")
            a(f"s_add_u32 s{sT0}, s{sXO}, {st*128}")
            a(f"buffer_load_dwordx4 v{v}, {sr(SX,4)}, s{sT0} offen lds")
        for jj in (0, 1):
            a(f"s_add_u32 m0, s{sM0}, {sl*32768 + 16384 + jj*1024}")
            a(f"s_add_u32 s{sT0}, s{sWO}, {(st*64 + 4*jj)*3840}")
            a(f"buffer_load_dwordx4 v{vWO}, {sr(SW,4)}, s{sT0} offen lds")
    for st in range(min(NS - 1, 10) if NS > 1 else 1):
        dma(st)
    a(f"""
    v_and_b32 v{vT}, 31, v{vLANE}
    v_lshrrev_b32 v{vT+1}, 5, v{vLANE}
    s_and_b32 s{sT0}, s{sWAVE}, 1
    s_lshl_b32 s{sT0}, s{sT0}, 13
    v_lshlrev_b32 v{vT+2}, 7, v{vT}
    v_add_u32 v{vT+2}, s{sT0}, v{vT+2}
    v_bfe_u32 v{vT+3}, v{vLANE}, 1, 3
    """)
    for s in range(4):
        a(f"""
        v_or_b32 v{vT+4}, {2*s}, v{vT+1}
        v_xor_b32 v{vT+4}, v{vT+4}, v{vT+3}
        v_lshlrev_b32 v{vT+4}, 4, v{vT+4}
        v_add_u32 v{vXA+s}, v{vT+2}, v{vT+4}
        """)
        if NS > 2:
            a(f"v_add_u32 v{vXA+4+s}, 0x10000, v{vXA+s}")
    a(f"""
    v_bfe_u32 v{vT}, v{vLANE}, 2, 2
    v_lshrrev_b32 v{vT+1}, 5, v{vLANE}
    v_lshlrev_b32 v{vT+1}, 3, v{vT+1}
    v_add_u32 v{vT+1}, v{vT+1}, v{vT}
    v_lshlrev_b32 v{vT+1}, 8, v{vT+1}
    s_lshr_b32 s{sT0}, s{sWAVE}, 1
    v_xor_b32 v{vT+2}, s{sT0}, v{vT}
    v_lshlrev_b32 v{vT+2}, 6, v{vT+2}
    v_bfe_u32 v{vT+3}, v{vLANE}, 4, 1
    v_lshlrev_b32 v{vT+3}, 5, v{vT+3}
    v_and_b32 v{vT+4}, 3, v{vLANE}
    v_lshlrev_b32 v{vT+4}, 3, v{vT+4}
    v_add3_u32 v{vT+1}, v{vT+1}, v{vT+2}, v{vT+3}
    v_add_u32 v{vT+1}, v{vT+1}, v{vT+4}
    v_add_u32 v{vWA}, 16384, v{vT+1}
    """)
    if NS > 2:
        a(f"v_add_u32 v{vWA+1}, 0x10000, v{vWA}")
    for r in range(32):
        a(f"v_mov_b32 v{ACC+r}, 0")

    def reads(st, s, F):
        sl = st % NS
        hi, lo = divmod(sl * 32768, 65536)
        for tl in range(2):
            a(f"ds_read_b128 {vr(F+4*tl,4)}, v{vXA+4*hi+s} offset:{lo + tl*4096}")
        a(f"ds_read_b64_tr_b16 {vr(F+8,2)}, v{vWA+hi} offset:{lo + s*4096}")
        a(f"ds_read_b64_tr_b16 {vr(F+10,2)}, v{vWA+hi} offset:{lo + s*4096 + 1024}")
    def mm(F, vtype):
        for tl in range(2):
            if vtype: a(mfma32(ACC+16*tl, F+4*tl, F+8))
            else:     a(mfma32(ACC+16*tl, F+8, F+4*tl))
    def mainloop(vtype):
        for st in range(10):
            issued = min(10, st + NS - 1) if NS > 1 else st + 1
            a(f"s_waitcnt vmcnt({(issued - st - 1)*4})")
            a("s_barrier")
            reads(st, 0, FA)
            reads(st, 1, FB)
            if st + NS - 1 < 10 and NS > 1:
                dma(st + NS - 1)
            a("s_waitcnt lgkmcnt(4)")
            mm(FA, vtype)
            reads(st, 2, FA)
            a("s_waitcnt lgkmcnt(4)")
            mm(FB, vtype)
            reads(st, 3, FB)
            a("s_waitcnt lgkmcnt(4)")
            mm(FA, vtype)
            a("s_waitcnt lgkmcnt(0)")
            mm(FB, vtype)
    a(f"s_cmp_ge_u32 s{sCB}, 10")
    a(f"s_cbranch_scc1 {pre}_vpart")
    mainloop(False)
    a(f"""
    s_cmp_lt_u32 s{sCB}, 5
    s_cselect_b32 s{sT1}, {QSCALE}, 1.0
    s_cselect_b32 s{sT2}, {L.QF}, {L.KF}
    s_cselect_b32 s{sT0}, 0, 160
    s_lshl_b32 s25, s{sCB}, 5
    s_lshr_b32 s26, s{sWAVE}, 1
    s_lshl_b32 s26, s26, 3
    s_add_u32 s25, s25, s26
    s_sub_u32 s25, s25, s{sT0}
    s_and_b32 s26, s{sWAVE}, 1
    s_lshl_b32 s26, s26, 1
    s_lshl_b32 s27, s{sRB}, 2
    s_add_u32 s27, s27, s26
    s_mul_i32 s27, s27, 1280
    s_add_u32 s27, s27, s{sT2}
    v_and_b32 v{vT}, 31, v{vLANE}
    v_lshrrev_b32 v{vT+1}, 5, v{vLANE}
    v_add_u32 v{vT+1}, s25, v{vT+1}
    s_mov_b32 s28, 52429
    s_mov_b32 s29, 81920
    """)
    for rg in range(4):
        g, hd, dq, off, t2 = vT+2, vT+3, vT+4, vT+5+rg, vT+9
        a(f"""
        v_add_u32 v{g}, {2*rg}, v{vT+1}
        v_mul_lo_u32 v{hd}, v{g}, s28
        v_lshrrev_b32 v{hd}, 18, v{hd}
        v_mul_u32_u24 v{dq}, 5, v{hd}
        v_sub_u32 v{dq}, v{g}, v{dq}
        v_mul_lo_u32 v{hd}, v{hd}, s29
        v_and_b32 v{off}, 1, v{dq}
        v_lshlrev_b32 v{off}, 9, v{off}
        v_lshrrev_b32 v{t2}, 1, v{dq}
        v_lshlrev_b32 v{t2}, 3, v{t2}
        v_add_u32 v{off}, v{off}, v{t2}
        v_lshlrev_b32 v{t2}, 4, v{vT}
        v_add_u32 v{off}, v{off}, v{t2}
        v_lshlrev_b32 v{t2}, 3, v{vT}
        v_add_u32 v{t2}, 1024, v{t2}
        v_cmp_eq_u32 vcc, 4, v{dq}
        v_cndmask_b32 v{off}, v{off}, v{t2}, vcc
        v_add_u32 v{off}, v{off}, v{hd}
        """)
    for tl in range(2):
        for rg in range(4):
            b = ACC + 16*tl + 4*rg
            for i in range(4):
                a(f"v_mul_f32 v{b+i}, s{sT1}, v{b+i}")
            P = FA + 2*(rg & 1) + 4*(tl & 1)
            a(f"v_cvt_pk_bf16_f32 v{P}, v{b}, v{b+1}")
            a(f"v_cvt_pk_bf16_f32 v{P+1}, v{b+2}, v{b+3}")
            a(f"buffer_store_dwordx2 {vr(P,2)}, v{vT+5+rg}, {sr(SWS,4)}, s27 offen offset:{tl*1280}")
    a("s_endpgm")
    a.label(f"{pre}_vpart")
    mainloop(True)
    a(f"""
    s_sub_u32 s25, s{sCB}, 10
    s_lshl_b32 s25, s25, 7
    s_lshr_b32 s26, s{sWAVE}, 1
    s_lshl_b32 s26, s26, 5
    s_add_u32 s25, s25, s26
    s_and_b32 s26, s{sWAVE}, 1
    s_lshl_b32 s26, s26, 1
    s_lshl_b32 s27, s{sRB}, 2
    s_add_u32 s27, s27, s26
    s_mul_i32 s27, s27, 1536
    s_add_u32 s27, s27, {L.VF}
    v_and_b32 v{vT}, 31, v{vLANE}
    v_add_u32 v{vT}, s25, v{vT}
    s_mov_b32 s28, 52429
    v_mul_lo_u32 v{vT+1}, v{vT}, s28
    v_lshrrev_b32 v{vT+1}, 20, v{vT+1}
    v_mul_u32_u24 v{vT+2}, 20, v{vT+1}
    v_sub_u32 v{vT+2}, v{vT}, v{vT+2}
    s_mov_b32 s29, 98304
    v_mul_lo_u32 v{vT+1}, v{vT+1}, s29
    v_lshrrev_b32 v{vT+3}, 5, v{vLANE}
    v_mul_u32_u24 v{vT+3}, 384, v{vT+3}
    v_add_u32 v{vT+1}, v{vT+1}, v{vT+3}
    v_lshlrev_b32 v{vT+3}, 4, v{vT+2}
    v_add_u32 v{vT+4}, v{vT+1}, v{vT+3}
    v_add3_u32 v{vT+5}, v{vT+1}, v{vT+3}, 0
    v_add_u32 v{vT+5}, 320, v{vT+5}
    v_cmp_eq_u32 vcc, 0, v{vT+2}
    v_mov_b32 v{vT+6}, 0x3f803f80
    v_cndmask_b32 v{vT+8}, 0, v{vT+6}, vcc
    v_cndmask_b32 v{vT+9}, 0, v{vT+6}, vcc
    v_cndmask_b32 v{vT+10}, 0, v{vT+6}, vcc
    v_cndmask_b32 v{vT+11}, 0, v{vT+6}, vcc
    v_cmp_gt_u32 s[30:31], 4, v{vT+2}
    """)
    for tl in range(2):
        for aa in range(2):
            b = ACC + 16*tl + 8*aa
            P = FA + 4*aa
            for i in range(4):
                a(f"v_cvt_pk_bf16_f32 v{P+i}, v{b+2*i}, v{b+2*i+1}")
            a(f"buffer_store_dwordx4 {vr(P,4)}, v{vT+4}, {sr(SWS,4)}, s27 offen offset:{tl*1536 + aa*768}")
    a("s_and_saveexec_b64 s[32:33], s[30:31]")
    a(f"s_cbranch_execz {pre}_vdone")
    for tl in range(2):
        for aa in range(2):
            a(f"buffer_store_dwordx4 {vr(vT+8,4)}, v{vT+5}, {sr(SWS,4)}, s27 offen offset:{tl*1536 + aa*768}")
    a.label(f"{pre}_vdone")
    a("s_endpgm")
    a.label(f"{pre}_gate")
    SG = 8
    a(f"s_load_dwordx2 {sr(SG,2)}, s[0:1], {ARG['gate_w']}")
    a(f"s_mov_b32 s{SG+2}, {SIZE['gate_w']}")
    a(f"s_mov_b32 s{SG+3}, 0x20000")
    a(f"""
    s_lshl_b32 s{sT0}, s{sRB}, 7
    s_lshl_b32 s{sT1}, s{sWAVE}, 4
    s_add_u32 s{sT0}, s{sT0}, s{sT1}
    v_lshrrev_b32 v{vT}, 2, v{vLANE}
    v_add_u32 v{vT}, s{sT0}, v{vT}
    v_mul_u32_u24 v{vT+1}, 1280, v{vT}
    v_and_b32 v{vT+2}, 3, v{vLANE}
    v_lshlrev_b32 v{vT+2}, 4, v{vT+2}
    v_add_u32 v{vT+1}, v{vT+1}, v{vT+2}
    v_mov_b32 v{vT+3}, 0
    s_waitcnt lgkmcnt(0)
    """)
    XB, GB = 32, 72
    for half in range(2):
        for i in range(10):
            ch = half*10 + i
            a(f"buffer_load_dwordx4 {vr(XB+4*i,4)}, v{vT+1}, {sr(SX,4)}, 0 offen offset:{ch*64}")
            a(f"buffer_load_dwordx4 {vr(GB+4*i,4)}, v{vT+2}, {sr(SG,4)}, 0 offen offset:{ch*64}")
        a("s_waitcnt vmcnt(0)")
        for i in range(40):
            a(f"""
            v_lshlrev_b32 v{vT+4}, 16, v{XB+i}
            v_lshlrev_b32 v{vT+5}, 16, v{GB+i}
            v_fmac_f32 v{vT+3}, v{vT+4}, v{vT+5}
            v_and_b32 v{vT+4}, 0xffff0000, v{XB+i}
            v_and_b32 v{vT+5}, 0xffff0000, v{GB+i}
            v_fmac_f32 v{vT+3}, v{vT+4}, v{vT+5}
            """)
    a(f"""
    v_add_f32_dpp v{vT+4}, v{vT+3}, v{vT+3} quad_perm:[1,0,3,2] row_mask:0xf bank_mask:0xf
    v_add_f32_dpp v{vT+3}, v{vT+4}, v{vT+4} quad_perm:[2,3,0,1] row_mask:0xf bank_mask:0xf
    v_mul_f32 v{vT+3}, {LOG2E ^ 0x80000000}, v{vT+3}
    v_exp_f32 v{vT+3}, v{vT+3}
    v_add_f32 v{vT+3}, 1.0, v{vT+3}
    v_rcp_f32 v{vT+3}, v{vT+3}
    v_lshlrev_b32 v{vT}, 2, v{vT}
    v_and_b32 v{vT+2}, 3, v{vLANE}
    v_cmp_eq_u32 vcc, 0, v{vT+2}
    s_and_saveexec_b64 s[32:33], vcc
    s_cbranch_execz {pre}_gdone
    s_mov_b32 s{sT0}, {L.GF}
    buffer_store_dword v{vT+3}, v{vT}, {sr(SWS,4)}, s{sT0} offen
    """)
    a.label(f"{pre}_gdone")
    a("s_endpgm")

def qkv_kernel(NS=2):
    a = Asm()
    a("s_cmp_ge_u32 s2, 256")
    a("s_cbranch_scc1 q_exit")
    qkv_program(a, NS)
    a.label("q_exit")
    a("s_endpgm")
    return kernel_text("qkv_kernel", a, 128), NS*32768
```

```python
import sys, os
sys.path.insert(0, os.path.dirname(__file__))
NAME = "gated_mix__mha_block__swiglu_ffn__prompt"
HEADER = open(f"cdna_kernels/{NAME}.s.ref").read().split("; Override launch geometry")[0]

def build(parts, path):
    out = HEADER
    seen = []
    for n, grid, block, lds, text in parts:
        out += f"; @launch kernel={n} grid=({grid},1,1) block=({block},1,1) lds={lds}\n"
    out += '.amdgcn_target "amdgcn-amd-amdhsa--gfx950"\n'
    for n, grid, block, lds, text in parts:
        if n not in seen:
            seen.append(n)
            out += text
    open(path, "w").write(out)
    print("wrote", path, len(out), "bytes")

if __name__ == "__main__":
    import k_qkv
    parts = []
    mode = sys.argv[1] if len(sys.argv) > 1 else "all"
    NS = int(os.environ.get("QKV_NS", "2"))
    t, lds = k_qkv.qkv_kernel(NS)
    parts.append(("qkv_kernel", 256, 512, lds, t))
    if mode in ("all", "g1"):
        import k_g1
        t, lds = k_g1.g1_kernel()
        parts.append(("g1_kernel", 256, 512, lds, t))
    if mode in ("all", "attn"):
        import k_attn
        t, lds = k_attn.attn_kernel()
        parts.append(("attn_kernel", 256, 512, lds, t))
    if mode in ("all",):
        import k_g2
        t, lds = k_g2.g2_kernel()
        parts.append(("g2_kernel", 256, 512, lds, t))
    path = sys.argv[2] if len(sys.argv) > 2 else f"cdna_kernels/{NAME}.s"
    build(parts, path)
```
